```python
import torch

def _softmax(x, axis=-1):
    return torch.softmax(x, dim=axis)
def _gelu(x):
    return torch.nn.functional.gelu(x, approximate="tanh")
def _silu(x):
    return torch.nn.functional.silu(x)
def _sigmoid(x):
    return torch.sigmoid(x)
def _layernorm(x, axis=-1, eps=1e-5):
    m = x.mean(dim=axis, keepdim=True)
    v = x.var(dim=axis, keepdim=True, unbiased=False)
    return (x - m) / torch.sqrt(v + eps)
def _scatter_add(tgt, idx, src, axis=0):
    return tgt.clone().index_add_(axis, idx, src)
def _segment_sum(src, seg, n):
    out = torch.zeros((n,) + src.shape[1:], dtype=src.dtype)
    return out.index_add_(0, seg, src)
def _pad(x, pw):
    flat = tuple(v for pair in reversed(pw) for v in pair)
    return torch.nn.functional.pad(x, flat)

kernel_name = 'concat_heads__grouped_kv_mqa__ssm_conv_s5__prompt'

def setup_inputs():

    _w = (lambda a: (lambda t: t.to(torch.bfloat16) if t.is_floating_point() else t)(torch.as_tensor(a)))
    def _A_setup():
        B, S, D, H = 1, 2048, 640, 32
        Dh = D // H
        return {
            "x": _w((lambda *s: torch.randn(*s, dtype=torch.bfloat16) * 0.05)(B, S, D)),
            "wq": _w((lambda *s: torch.randn(*s, dtype=torch.bfloat16) * 0.8)(D, H * Dh)),
            "wk": _w((lambda *s: torch.randn(*s, dtype=torch.bfloat16) * 0.8)(D, Dh)),
            "wv": _w((lambda *s: torch.randn(*s, dtype=torch.bfloat16) * 0.05)(D, Dh)),
            "wo": _w((lambda *s: torch.randn(*s, dtype=torch.bfloat16) * 0.05)(H * Dh, D)),
        }
    _A_in = _A_setup()

    def _B_setup():
        B, S, D = 1, 2048, 640
        P = D
        Lambda_re = -0.5 * (lambda _x: torch.exp(torch.as_tensor(_x)))((lambda *s: torch.randn(*s, dtype=torch.bfloat16) * 0.2)(P))
        Lambda_im = (lambda *s: torch.randn(*s, dtype=torch.bfloat16) * 0.4)(P) * 1.0
        B_re = (lambda *s: torch.randn(*s, dtype=torch.bfloat16) * 0.2)(P, D) * (D ** -0.5)
        B_im = (lambda *s: torch.randn(*s, dtype=torch.bfloat16) * 0.2)(P, D) * (D ** -0.5)
        C_re = (lambda *s: torch.randn(*s, dtype=torch.bfloat16) * 0.2)(D, P) * (P ** -0.5)
        C_im = (lambda *s: torch.randn(*s, dtype=torch.bfloat16) * 0.2)(D, P) * (P ** -0.5)
        log_dt = (lambda *s: torch.randn(*s, dtype=torch.bfloat16) * 0.2)(P) * 0.3 - 2.0
        Dskip = (lambda *s: torch.randn(*s, dtype=torch.bfloat16) * 0.05)(D)
        return {
            "x": _w((lambda *s: torch.randn(*s, dtype=torch.bfloat16) * 0.05)(B, S, D)),
            "Lambda_re": _w(Lambda_re),
            "Lambda_im": _w(Lambda_im),
            "B_re": _w(B_re),
            "B_im": _w(B_im),
            "C_re": _w(C_re),
            "C_im": _w(C_im),
            "log_dt": _w(log_dt),
            "Dskip": _w(Dskip),
        }
    _B_in = _B_setup()

    return {
        "A_x": _A_in["x"],
        "A_wq": _A_in["wq"],
        "A_wk": _A_in["wk"],
        "A_wv": _A_in["wv"],
        "A_wo": _A_in["wo"],
        "B_x": _B_in["x"],
        "B_Lambda_re": _B_in["Lambda_re"],
        "B_Lambda_im": _B_in["Lambda_im"],
        "B_B_re": _B_in["B_re"],
        "B_B_im": _B_in["B_im"],
        "B_C_re": _B_in["C_re"],
        "B_C_im": _B_in["C_im"],
        "B_log_dt": _B_in["log_dt"],
        "B_Dskip": _B_in["Dskip"],
    }

def reference(A_x, A_wq, A_wk, A_wv, A_wo, B_x, B_Lambda_re, B_Lambda_im, B_B_re, B_B_im, B_C_re, B_C_im, B_log_dt, B_Dskip):
    def _A_ref(x, wq, wk, wv, wo):
        B, S, D = x.shape
        H = 32
        Dh = D // H
        q = (lambda x, *d: x.permute(*d))((x @ wq).reshape(B, S, H, Dh), 0, 2, 1, 3)
        k = x @ wk
        v = x @ wv
        scores = torch.einsum("bhqd,bkd->bhqk", q, k) * (Dh ** -0.5)
        p = _softmax(scores, axis=-1)
        o = torch.einsum("bhqk,bkd->bhqd", p, v)
        return (lambda x, *d: x.permute(*d))(o, 0, 2, 1, 3).reshape(B, S, H * Dh) @ wo

    def _B_ref(x, Lambda_re, Lambda_im, B_re, B_im, C_re, C_im, log_dt, Dskip):
        Bsz, L, H = x.shape
        Lam = Lambda_re + 1j * Lambda_im
        Bmat = B_re + 1j * B_im
        Cmat = C_re + 1j * C_im
        dt = torch.exp(log_dt)
        Lam_bar = torch.exp(dt * Lam)
        B_bar = ((Lam_bar - 1.0) / Lam)[:, None] * Bmat
        Bu = torch.einsum("bld,pd->blp", x + 0j, B_bar)
        h = torch.zeros_like(Bu[:, 0, :])
        hs = []
        for t in range(L):
            h = Lam_bar[None, :] * h + Bu[:, t, :]
            hs.append(h)
        hseq = torch.stack(hs, 1)
        y = 2.0 * torch.einsum("blp,dp->bld", hseq, Cmat).real + x * Dskip[None, None, :]
        return y

    a = _A_ref(A_x, A_wq, A_wk, A_wv, A_wo)
    b = _B_ref(B_x, B_Lambda_re, B_Lambda_im, B_B_re, B_B_im, B_C_re, B_C_im, B_log_dt, B_Dskip)
    return torch.concatenate([a, b], axis=-1)
```

```python
import sys, os, subprocess, struct, ctypes, time
sys.path.insert(0, "cdna_kernels")
import numpy as np
import cdna_launch as cl

HEAD = """.amdgcn_target "amdgcn-amd-amdhsa--gfx950"
.text
"""

def kernel_text(name, body, vgpr=128, accum=None, sgpr=96):
    accum = accum or ((vgpr + 3) // 4 * 4)
    return f"""
.text
.globl {name}
.p2align 8
.type {name},@function
{name}:
{body}
s_endpgm
.section .rodata,"a"
.p2align 6
.amdhsa_kernel {name}
  .amdhsa_next_free_vgpr {vgpr}
  .amdhsa_next_free_sgpr {sgpr}
  .amdhsa_accum_offset {min(accum,256)}
  .amdhsa_group_segment_fixed_size 0
  .amdhsa_kernarg_size 24
  .amdhsa_user_sgpr_count 2
  .amdhsa_user_sgpr_kernarg_segment_ptr 1
  .amdhsa_system_sgpr_workgroup_id_x 1
.end_amdhsa_kernel
"""

def meta(names, vg):
    s = "\n.amdgpu_metadata\n---\namdhsa.version: [1, 2]\namdhsa.kernels:\n"
    for n in names:
        s += f"""  - .name: {n}
    .symbol: {n}.kd
    .kernarg_segment_size: 24
    .kernarg_segment_align: 8
    .group_segment_fixed_size: 0
    .private_segment_fixed_size: 0
    .wavefront_size: 64
    .sgpr_count: 102
    .vgpr_count: {vg[n]}
    .max_flat_workgroup_size: 1024
    .args:
      - {{.name: kernargs, .size: 24, .offset: 0, .value_kind: by_value}}
"""
    return s + "...\n.end_amdgpu_metadata\n"

def build(kernels, path):
    txt = HEAD
    vg = {}
    for name, body, vgpr in kernels:
        txt += kernel_text(name, body, vgpr)
        vg[name] = vgpr
    txt += meta([k[0] for k in kernels], vg)
    open(path + ".s", "w").write(txt)
    r = subprocess.run(["clang", "-x", "assembler", "-target", "amdgcn-amd-amdhsa",
                        "-mcpu=gfx950", path + ".s", "-o", path + ".co"], capture_output=True, text=True)
    if r.returncode:
        print(r.stderr[:4000]); sys.exit(1)
    return path + ".co"

def timed_loop(setup, loop_body, iters):
    return f"""
    s_load_dwordx2 s[4:5], s[0:1], 0
    s_load_dwordx2 s[20:21], s[0:1], 8
    s_waitcnt lgkmcnt(0)
    s_mov_b32 s8, s4
    s_mov_b32 s9, s5
    s_mov_b32 s10, 0x100000
    s_mov_b32 s11, 0x00020000
    s_mov_b32 s24, s20
    s_mov_b32 s25, s21
    s_mov_b32 s26, 0x4000000
    s_mov_b32 s27, 0x00020000
{setup}
    s_mov_b32 s12, {iters}
    s_barrier
    s_memtime s[14:15]
    s_waitcnt lgkmcnt(0)
.p2align 6
1:
{loop_body}
    s_sub_u32 s12, s12, 1
    s_cmp_lg_u32 s12, 0
    s_cbranch_scc1 1b
    s_nop 15
    s_nop 15
    s_memtime s[16:17]
    s_waitcnt lgkmcnt(0)
    s_sub_u32 s16, s16, s14
    v_lshrrev_b32 v1, 6, v0
    s_lshl_b32 s3, s2, 4
    v_add_u32 v1, s3, v1
    v_lshlrev_b32 v1, 2, v1
    v_mov_b32 v2, s16
    buffer_store_dword v2, v1, s[8:11], 0 offen
    s_waitcnt vmcnt(0)
"""

class Runner:
    def __init__(self, co):
        self.co = co
        self.out = cl.DeviceBuffer(1 << 20)
        self.inp = cl.DeviceBuffer.from_numpy((np.random.randn(1 << 24) * 0.5).astype(np.float32))
        self.mod = None
    def run(self, name, grid, block, lds=0, reps=3):
        k = cl.AsmKernel(self.co, name, check=False)
        ka = struct.pack("<3Q", self.out.ptr, self.inp.ptr, 0)
        e0 = ctypes.c_void_p(); e1 = ctypes.c_void_p()
        cl._hip.hipEventCreate(ctypes.byref(e0)); cl._hip.hipEventCreate(ctypes.byref(e1))
        ts = []
        for _ in range(reps):
            cl._hip.hipMemset(ctypes.c_void_p(self.out.ptr), 0, 1 << 20)
            cl._hip.hipDeviceSynchronize()
            cl._hip.hipEventRecord(e0, None)
            k.launch((grid, 1, 1), (block, 1, 1), ka, lds)
            cl._hip.hipEventRecord(e1, None)
            cl._hip.hipDeviceSynchronize()
            ms = ctypes.c_float()
            cl._hip.hipEventElapsedTime(ctypes.byref(ms), e0, e1)
            ts.append(ms.value * 1e3)
        o = self.out.to_numpy(np.uint32, (1 << 18,))
        k.unload()
        nw = block // 64
        cyc = o[: grid * 16].reshape(grid, 16)[:, :nw]
        return cyc, min(ts)
```

```python
from mblib import *
pro = """
    s_load_dwordx2 s[4:5], s[0:1], 0
    s_load_dwordx2 s[20:21], s[0:1], 8
    s_waitcnt lgkmcnt(0)
    s_mov_b32 s8, s4
    s_mov_b32 s9, s5
    s_mov_b32 s10, 0x100000
    s_mov_b32 s11, 0x00020000
    s_mov_b32 s24, s20
    s_mov_b32 s25, s21
    s_mov_b32 s26, 0x4000000
    s_mov_b32 s27, 0x00020000
    v_lshlrev_b32 v1, 2, v0
"""
def st(regs):
    return "".join(f"    buffer_store_dword v{r}, v1, s[8:11], 0 offen offset:{256*i}\n" for i, r in enumerate(regs)) + "    s_waitcnt vmcnt(0)\n"
ks = []
ks.append(("tr", pro + """
    v_lshlrev_b32 v2, 4, v0
    s_mov_b32 m0, 64
    s_nop 0
    buffer_load_dwordx4 v2, s[24:27], 0 offen offset:1056 lds
    s_waitcnt vmcnt(0)
    v_lshlrev_b32 v3, 3, v0
    ds_read_b64_tr_b16 v[4:5], v3 offset:1120
    ds_read_b32 v6, v1 offset:1120
    s_waitcnt lgkmcnt(0)
""" + st([4, 5, 6]), 64))
ks.append(("perm", pro + """
    v_mov_b32 v4, v0
    v_add_u32 v5, 100, v0
    v_mov_b32 v6, v0
    v_add_u32 v7, 100, v0
    s_nop 1
    v_permlane16_swap_b32 v4, v5
    v_permlane32_swap_b32 v6, v7
    s_nop 1
""" + st([4, 5, 6, 7]), 64))
ks.append(("pk", pro + """
    v_mov_b32 v4, 2.0
    v_mov_b32 v5, 0x40400000
    v_mov_b32 v6, 0x40a00000
    v_mov_b32 v7, 0x40e00000
    v_mov_b32 v8, 0x42c80000
    v_mov_b32 v9, 0x447a0000
    v_pk_fma_f32 v[10:11], v[4:5], v[6:7], v[8:9] op_sel:[1,1,0] op_sel_hi:[1,0,1] neg_lo:[1,0,0]
    v_pk_fma_f32 v[12:13], v[4:5], v[6:7], v[10:11] op_sel:[0,0,0] op_sel_hi:[0,1,1]
    v_pk_mul_f32 v[14:15], v[4:5], v[6:7] op_sel:[1,1] op_sel_hi:[1,0] neg_lo:[1,0]
    v_cvt_pk_bf16_f32 v16, v4, -v5
""" + st([10, 11, 12, 13, 14, 15, 16]), 64))
ks.append(("unal", pro + """
    v_mul_u32_u24 v2, 40, v0
    s_mov_b32 m0, 0
    v_add_u32 v2, 8, v2
    buffer_load_dwordx4 v2, s[24:27], 0 offen lds
    s_waitcnt vmcnt(0)
    v_lshlrev_b32 v3, 4, v0
    ds_read_b128 v[4:7], v3
    s_waitcnt lgkmcnt(0)
""" + st([4, 5, 6, 7]), 64))
co = build(ks, "mb9")
if os.path.exists("/dev/kfd"):
    out = cl.DeviceBuffer(1 << 20)
    inp = cl.DeviceBuffer.from_numpy(np.arange(1 << 16, dtype=np.uint16))
    for name, _, _ in ks:
        k = cl.AsmKernel(co, name, check=False)
        cl._hip.hipMemset(ctypes.c_void_p(out.ptr), 0, 1 << 20)
        k.launch((1,1,1), (64,1,1), struct.pack("<3Q", out.ptr, inp.ptr, 0), 8192)
        cl._hip.hipDeviceSynchronize()
        o = out.to_numpy(np.uint32, (8, 64))
        print(name)
        if name == "tr":
            for r in range(3): print([((int(x) & 0xffff) - 528, (int(x) >> 16) - 528) for x in o[r][:36]])
        elif name == "perm":
            for r in range(4): print(list(o[r]))
        elif name == "pk":
            print(o[:6, 0].view(np.float32), hex(o[6, 0]))
        else:
            print([(int(o[0, l]) & 0xffff, int(o[3, l]) >> 16) for l in range(6)])
```
